```python
import torch

def _softmax(x, axis=-1):
    return torch.softmax(x, dim=axis)
def _gelu(x):
    return torch.nn.functional.gelu(x, approximate="tanh")
def _silu(x):
    return torch.nn.functional.silu(x)
def _sigmoid(x):
    return torch.sigmoid(x)
def _layernorm(x, axis=-1, eps=1e-5):
    m = x.mean(dim=axis, keepdim=True)
    v = x.var(dim=axis, keepdim=True, unbiased=False)
    return (x - m) / torch.sqrt(v + eps)
def _scatter_add(tgt, idx, src, axis=0):
    return tgt.clone().index_add_(axis, idx, src)
def _segment_sum(src, seg, n):
    out = torch.zeros((n,) + src.shape[1:], dtype=src.dtype)
    return out.index_add_(0, seg, src)
def _pad(x, pw):
    flat = tuple(v for pair in reversed(pw) for v in pair)
    return torch.nn.functional.pad(x, flat)

kernel_name = 'gated_mix__linear_attn_block__sliding_block__prompt'

def setup_inputs():

    _w = (lambda a: (lambda t: t.to(torch.bfloat16) if t.is_floating_point() else t)(torch.as_tensor(a)))
    def _A_setup():
        B, S, D = 1, 2048, 448
        return {
            "x": _w((lambda *s: torch.randn(*s, dtype=torch.bfloat16) * 0.05)(B, S, D)),
            "wqkv": _w((lambda *s: torch.randn(*s, dtype=torch.bfloat16) * 1.6)(D, 3 * D)),
            "wo": _w((lambda *s: torch.randn(*s, dtype=torch.bfloat16) * 0.8)(D, D)),
        }
    _A_in = _A_setup()

    def _B_setup():
        B, S, D = 1, 2048, 448
        return {
            "x": _w((lambda *s: torch.randn(*s, dtype=torch.bfloat16) * 0.05)(B, S, D)),
            "wqkv": _w((lambda *s: torch.randn(*s, dtype=torch.bfloat16) * 1.6)(D, 3 * D)),
            "wo": _w((lambda *s: torch.randn(*s, dtype=torch.bfloat16) * 0.05)(D, D)),
        }
    _B_in = _B_setup()

    return {
        "A_x": _A_in["x"],
        "A_wqkv": _A_in["wqkv"],
        "A_wo": _A_in["wo"],
        "B_x": _B_in["x"],
        "B_wqkv": _B_in["wqkv"],
        "B_wo": _B_in["wo"],
        "gate_w": _w((lambda *s: torch.randn(*s, dtype=torch.bfloat16) * 0.05)(448) * 16.0),
    }

def reference(A_x, A_wqkv, A_wo, B_x, B_wqkv, B_wo, gate_w):
    def _A_ref(x, wqkv, wo):
        B, S, D = x.shape
        H = 16; Dh = D // H
        qkv = (lambda x, *d: x.permute(*d))((x @ wqkv).reshape(B, S, 3, H, Dh), 2, 0, 3, 1, 4)
        q, k, v = qkv[0], qkv[1], qkv[2]
        phi = lambda t: torch.where(t > 0, t + 1, torch.exp(t)) + 1e-6
        pq, pk = phi(q), phi(k)
        kv = torch.einsum("bhsd,bhse->bhde", pk, v)
        z = torch.einsum("bhsd->bhd", pk)
        num = torch.einsum("bhqd,bhde->bhqe", pq, kv)
        den = torch.einsum("bhqd,bhd->bhq", pq, z)[..., None] + 1e-6
        o = num / den
        return (lambda x, *d: x.permute(*d))(o, 0, 2, 1, 3).reshape(B, S, D) @ wo

    def _B_ref(x, wqkv, wo):
        B, S, D = x.shape
        H = 16; Dh = D // H; W = 256
        qkv = (lambda x, *d: x.permute(*d))((x @ wqkv).reshape(B, S, 3, H, Dh), 2, 0, 3, 1, 4)
        q, k, v = qkv[0], qkv[1], qkv[2]
        scores = torch.einsum("bhqd,bhkd->bhqk", q, k) * (Dh ** -0.5)
        idx = torch.arange(S)
        mask = (idx[:, None] - idx[None, :] >= 0) & (idx[:, None] - idx[None, :] < W)
        scores = torch.where(mask[None, None], scores, -1e9)
        p = _softmax(scores, axis=-1)
        o = torch.einsum("bhqk,bhkd->bhqd", p, v)
        return (lambda x, *d: x.permute(*d))(o, 0, 2, 1, 3).reshape(B, S, D) @ wo

    x = A_x
    g = _sigmoid((x * gate_w).sum(-1, keepdims=True))
    a = _A_ref(x, A_wqkv, A_wo)
    b = _B_ref(x, B_wqkv, B_wo)
    return g * a + (1 - g) * b
```

```python
class Asm:
    def __init__(self):
        self.lines = []
        self._uid = 0

    def __call__(self, text):
        for ln in text.split("\n"):
            ln = ln.strip()
            if ln:
                self.lines.append(("" if ln.endswith(":") else "    ") + ln)

    def c(self, text):
        self.lines.append("    ; " + text)

    def label(self, name):
        self.lines.append(name + ":")

    def uid(self, prefix):
        self._uid += 1
        return f"{prefix}_{self._uid}"

    def text(self):
        return "\n".join(self.lines)


def vr(base, n=1):
    return f"v{base}" if n == 1 else f"v[{base}:{base + n - 1}]"


def ar(base, n=1):
    return f"a{base}" if n == 1 else f"a[{base}:{base + n - 1}]"


def sr(base, n=1):
    return f"s{base}" if n == 1 else f"s[{base}:{base + n - 1}]"


def srd(a, reg, lo, hi, nbytes):
    a(f"s_mov_b32 s{reg}, s{lo}")
    a(f"s_and_b32 s{reg + 1}, s{hi}, 0xffff")
    a(f"s_mov_b32 s{reg + 2}, {nbytes}")
    a(f"s_mov_b32 s{reg + 3}, 0x20000")


def kernel_descriptor(name, nvgpr, accum, nsgpr=102):
    return f""".amdhsa_kernel {name}
  .amdhsa_next_free_vgpr {nvgpr}
  .amdhsa_next_free_sgpr {nsgpr}
  .amdhsa_accum_offset {accum}
  .amdhsa_group_segment_fixed_size 0
  .amdhsa_kernarg_size 80
  .amdhsa_user_sgpr_count 2
  .amdhsa_user_sgpr_kernarg_segment_ptr 1
  .amdhsa_system_sgpr_workgroup_id_x 1
.end_amdhsa_kernel
"""
```

```python
NAME = "gated_mix__linear_attn_block__sliding_block__prompt"

KA_AX, KA_AWQKV, KA_AWO, KA_BX, KA_BWQKV, KA_BWO, KA_GATE, KA_OUT, KA_DBG, KA_WS = 0, 8, 16, 24, 32, 40, 48, 56, 64, 72

X_BYTES = 2048 * 448 * 2
WQKV_BYTES = 448 * 1344 * 2
WO_BYTES = 448 * 448 * 2
GATE_BYTES = 448 * 2
OUT_BYTES = 2048 * 448 * 2

WS_QB = 0x000000
WS_KB = 0x200000
WS_VB = 0x400000
WS_PQ = 0x600000
WS_O = 0x800000
WS_KVF = 0xC00000
WS_G = 0xC10000
WS_FLAGS = 0xC20000
WS_USED = 0xD00000

LOG2E = 1.4426950408889634
SCALE_C = (28 ** -0.5) * LOG2E


def f32bits(x):
    import struct
    return struct.unpack("<I", struct.pack("<f", x))[0]
```

```python
from asmlib import *
from common import *
from phase_g import *

S_MHI = 52
S_M28 = 54
S_MGE28 = 56
V_ONES = 207
V_T = 208


def lane_masks(a):
    a(f"s_mov_b32 s{S_MHI}, 0")
    a(f"s_mov_b32 s{S_MHI + 1}, -1")
    a(f"s_mov_b32 s{S_M28}, 0x10000000")
    a(f"s_mov_b32 s{S_M28 + 1}, 0x10000000")
    a(f"s_mov_b32 s{S_MGE28}, 0xf0000000")
    a(f"s_mov_b32 s{S_MGE28 + 1}, 0xf0000000")
    a(f"v_mov_b32 v{V_ONES}, 0x3f803f80")


def pack(a, acc, dst=None):
    dst = acc if dst is None else dst
    for j in range(8):
        a(f"v_cvt_pk_bf16_f32 v{dst + j}, v{acc + 2 * j}, v{acc + 2 * j + 1}")


def zero_feature_pad(a, d):
    for j in (6, 7):
        a(f"v_cndmask_b32_e64 v{d + j}, v{d + j}, 0, s[{S_MHI}:{S_MHI + 1}]")


def ones_column(a, d):
    for j in range(8):
        a(f"v_cndmask_b32_e64 v{d + j}, v{d + j}, v{V_ONES}, s[{S_M28}:{S_M28 + 1}]")


def zero_lanes_ge28(a, d):
    for j in range(8):
        a(f"v_cndmask_b32_e64 v{d + j}, v{d + j}, 0, s[{S_MGE28}:{S_MGE28 + 1}]")


def phi(a, acc):
    T = V_T
    a(f"s_mov_b32 s{S_T0}, {f32bits(LOG2E):#x}")
    a(f"s_mov_b32 s{S_T1}, {f32bits(LOG2E):#x}")
    a(f"s_mov_b32 s{S_T2}, {f32bits(1e-6):#x}")
    a(f"s_mov_b32 s{S_T3}, {f32bits(1e-6):#x}")
    for j in range(0, 16, 2):
        a(f"v_pk_mul_f32 {vr(T + j, 2)}, {vr(acc + j, 2)}, s[{S_T0}:{S_T1}]")
    for j in range(16):
        a(f"v_exp_f32 v{T + j}, v{T + j} clamp")
    for j in range(16):
        a(f"v_max_f32 v{acc + j}, 0, v{acc + j}")
    for j in range(0, 16, 2):
        a(f"v_pk_add_f32 {vr(T + j, 2)}, {vr(T + j, 2)}, s[{S_T2}:{S_T3}]")
    for j in range(0, 16, 2):
        a(f"v_pk_add_f32 {vr(acc + j, 2)}, {vr(acc + j, 2)}, {vr(T + j, 2)}")


def blob_store(a, d, soff, flags=""):
    a(f"buffer_store_dwordx4 {vr(d, 4)}, v{V_L16}, s[{S_SRD_WS}:{S_SRD_WS + 3}], s{soff} offen {flags}")
    a(f"buffer_store_dwordx4 {vr(d + 4, 4)}, v{V_L16}, s[{S_SRD_WS}:{S_SRD_WS + 3}], s{soff} offen offset:1024 {flags}")


def head_blob_offset(a, dst, base, hd):
    a(f"s_lshl_b32 s{dst}, s{S_P}, 1")
    a(f"s_add_u32 s{dst}, s{dst}, {hd}")
    a(f"s_lshl_b32 s{dst}, s{dst}, 6")
    a(f"s_lshl_b32 s{S_T1}, s{S_I}, 2")
    a(f"s_add_u32 s{dst}, s{dst}, s{S_T1}")
    a(f"s_add_u32 s{dst}, s{dst}, s{S_WAVE}")
    a(f"s_lshl_b32 s{dst}, s{dst}, 11")
    a(f"s_add_u32 s{dst}, s{dst}, {base}")


def gate(a, dst):
    a(f"v_mul_f32 v{dst}, {f32bits(-LOG2E):#x}, v{ACC_G}")
    a(f"v_exp_f32 v{dst}, v{dst}")
    a("s_nop 0")
    a(f"v_add_f32 v{dst}, 1.0, v{dst}")
    a(f"v_rcp_f32 v{dst}, v{dst}")


def gate_store(a, src):
    skip = a.uid("L_nog")
    a(f"s_or_b32 s{S_T0}, s{S_B}, s{S_P}")
    a(f"s_cmp_lg_u32 s{S_T0}, 0")
    a(f"s_cbranch_scc1 {skip}")
    a(f"s_lshl_b32 s{S_T0}, s{S_I}, 2")
    a(f"s_add_u32 s{S_T0}, s{S_T0}, s{S_WAVE}")
    a(f"s_lshl_b32 s{S_T0}, s{S_T0}, 7")
    a(f"s_add_u32 s{S_T0}, s{S_T0}, {WS_G}")
    a(f"v_and_b32 v2, 31, v{V_LANE}")
    a("v_lshlrev_b32 v2, 2, v2")
    a(f"buffer_store_dword v{src}, v2, s[{S_SRD_WS}:{S_SRD_WS + 3}], s{S_T0} offen")
    a.label(skip)


def epilogue_window(a):
    lane_masks(a)
    gate(a, V_T)
    for hd in range(2):
        for acc, base, kind in ((ACC_Q[hd], WS_QB, "t"), (ACC_K[hd], WS_KB, "t"), (ACC_V[hd], WS_VB, "f")):
            pack(a, acc)
            if kind == "t":
                zero_feature_pad(a, acc)
            else:
                ones_column(a, acc)
            head_blob_offset(a, S_T0, base, hd)
            blob_store(a, acc, S_T0)


LRED = 0


def epilogue_linear(a):
    lane_masks(a)
    gate(a, V_T)
    gate_store(a, V_T)
    for hd in range(2):
        phi(a, ACC_Q[hd])
        pack(a, ACC_Q[hd])
        zero_feature_pad(a, ACC_Q[hd])
        head_blob_offset(a, S_T0, WS_PQ, hd)
        blob_store(a, ACC_Q[hd], S_T0)
    for hd in range(2):
        k, v = ACC_K[hd], ACC_V[hd]
        phi(a, k)
        pack(a, k)
        zero_lanes_ge28(a, k)
        pack(a, v)
        ones_column(a, v)
        kv = FR[0] + 16 * hd
        a("s_nop 1")
        a(f"v_mfma_f32_32x32x16_bf16 {vr(kv, 16)}, {vr(k, 4)}, {vr(v, 4)}, 0")
        a(f"v_mfma_f32_32x32x16_bf16 {vr(kv, 16)}, {vr(k + 4, 4)}, {vr(v + 4, 4)}, {vr(kv, 16)}")
    a.c("cross-wave sum of the partial kv through LDS")
    a("s_waitcnt vmcnt(0)")
    a("s_barrier")
    a(f"s_lshl_b32 s{S_T0}, s{S_WAVE}, 13")
    a(f"v_add_u32 v2, s{S_T0}, v{V_L16}")
    a("s_nop 7")
    a("s_nop 7")
    for pc in range(8):
        a(f"ds_write_b128 v2, {vr(FR[0] + 4 * pc, 4)} offset:{LRED + pc * 1024}")
    a("s_waitcnt lgkmcnt(0)")
    a("s_barrier")
    a(f"s_lshl_b32 s{S_T0}, s{S_WAVE}, 11")
    a(f"v_add_u32 v2, s{S_T0}, v{V_L16}")
    T = FR[1]
    for src in range(4):
        for pc in range(2):
            a(f"ds_read_b128 {vr(T + 8 * src + 4 * pc, 4)}, v2 offset:{LRED + src * 8192 + pc * 1024}")
    a("s_waitcnt lgkmcnt(0)")
    for j in range(0, 8, 2):
        a(f"v_pk_add_f32 {vr(T + j, 2)}, {vr(T + j, 2)}, {vr(T + 8 + j, 2)}")
        a(f"v_pk_add_f32 {vr(T + 16 + j, 2)}, {vr(T + 16 + j, 2)}, {vr(T + 24 + j, 2)}")
    for j in range(0, 8, 2):
        a(f"v_pk_add_f32 {vr(T + j, 2)}, {vr(T + j, 2)}, {vr(T + 16 + j, 2)}")
    a.c("wave w owns registers 8(w&1)..8(w&1)+7 of head 2p + (w>>1)")
    a(f"s_lshl_b32 s{S_T0}, s{S_P}, 13")
    a(f"s_lshl_b32 s{S_T1}, s{S_WAVE}, 11")
    a(f"s_add_u32 s{S_T0}, s{S_T0}, s{S_T1}")
    a(f"s_add_u32 s{S_T0}, s{S_T0}, {WS_KVF}")
    a(f"v_lshlrev_b32 v2, 2, v{V_LANE}")
    for j in range(8):
        a(f"buffer_atomic_add_f32 v{T + j}, v2, s[{S_SRD_WS}:{S_SRD_WS + 3}], s{S_T0} offen offset:{256 * j}")
```

```python
from asmlib import *
from common import *

F_WREG = 29696
F_ACC = 16
F_WF = (80, 96)
F_VW = 112
F_VD = 114
F_L16 = 115
F_T = 116


def acc_reg(nb, tbl):
    return F_ACC + 16 * (2 * nb + tbl)


def w_lane_setup(a, lane, s_wave, s_tmp):
    a.c("wo DMA lane offsets: 8 rows x 128 B, chunk xor 4 on rows 2,3 (mod 4)")
    a(f"v_lshrrev_b32 v{F_T}, 3, v{lane}")
    a(f"v_mul_u32_u24 v{F_T + 1}, 896, v{F_T}")
    a(f"v_bfe_u32 v{F_T + 2}, v{lane}, 4, 1")
    a(f"v_lshlrev_b32 v{F_T + 2}, 2, v{F_T + 2}")
    a(f"v_and_b32 v{F_T + 3}, 7, v{lane}")
    a(f"v_xor_b32 v{F_T + 3}, v{F_T + 3}, v{F_T + 2}")
    a(f"v_lshl_add_u32 v{F_VD}, v{F_T + 3}, 4, v{F_T + 1}")
    a.c("wo fragment read addresses")
    a(f"v_bfe_u32 v{F_T}, v{lane}, 2, 2")
    a(f"v_lshrrev_b32 v{F_T + 1}, 5, v{lane}")
    a(f"v_lshl_add_u32 v{F_T + 1}, v{F_T + 1}, 2, v{F_T}")
    a(f"v_lshlrev_b32 v{F_T + 1}, 7, v{F_T + 1}")
    a(f"s_mul_i32 s{s_tmp}, s{s_wave}, {F_WREG}")
    a(f"v_add_u32 v{F_T + 1}, s{s_tmp}, v{F_T + 1}")
    a(f"v_and_b32 v{F_T + 2}, 1, v{lane}")
    a(f"v_lshl_add_u32 v{F_T + 1}, v{F_T + 2}, 3, v{F_T + 1}")
    a(f"v_bfe_u32 v{F_T + 2}, v{lane}, 4, 1")
    a(f"v_lshlrev_b32 v{F_T + 2}, 1, v{F_T + 2}")
    a(f"v_bfe_u32 v{F_T + 3}, v{lane}, 1, 1")
    a(f"v_or_b32 v{F_T + 2}, v{F_T + 2}, v{F_T + 3}")
    a(f"v_lshrrev_b32 v{F_T + 3}, 1, v{F_T}")
    a(f"v_lshlrev_b32 v{F_T + 3}, 2, v{F_T + 3}")
    a(f"v_or_b32 v{F_T + 4}, v{F_T + 2}, v{F_T + 3}")
    a(f"v_lshl_add_u32 v{F_VW}, v{F_T + 4}, 4, v{F_T + 1}")
    a(f"v_xor_b32 v{F_T + 3}, 4, v{F_T + 3}")
    a(f"v_or_b32 v{F_T + 4}, v{F_T + 2}, v{F_T + 3}")
    a(f"v_lshl_add_u32 v{F_VW + 1}, v{F_T + 4}, 4, v{F_T + 1}")


def w_dma(a, n, srd_w, s_woff, s_mbase, s_tmp):
    a(f"s_add_u32 m0, s{s_mbase}, {n * 1024}")
    a(f"s_add_u32 s{s_tmp}, s{s_woff}, {n * 8 * 896}")
    a(f"buffer_load_dwordx4 v{F_VD}, s[{srd_w}:{srd_w + 3}], s{s_tmp} offen lds")


def w_reads(hh, st, buf):
    out = []
    for nb in range(2):
        for t in range(2):
            off = (28 * hh + 16 * st + 8 * t) * 128
            out.append(f"ds_read_b64_tr_b16 {vr(F_WF[buf] + 4 * nb + 2 * t, 2)}, v{F_VW + nb} offset:{off}")
    return out


def mfmas(a, hh, st, buf):
    for nb in range(2):
        for tbl in range(2):
            o = ar(tbl * 64 + hh * 8 + st * 4, 4)
            acc = vr(acc_reg(nb, tbl), 16)
            a(f"v_mfma_f32_32x32x16_bf16 {acc}, {vr(F_WF[buf] + 4 * nb, 4)}, {o}, {acc}")


def reduce_store(a, lane, s_wave, s_m, s_nt, srd_out, s0, s1):
    a("s_waitcnt lgkmcnt(0)")
    a(f"s_mul_i32 s{s0}, s{s_wave}, {F_WREG}")
    a(f"v_add_u32 v{F_T}, s{s0}, v{F_L16}")
    a("s_nop 7")
    a("s_nop 3")
    for d in range(4):
        skip = a.uid("L_own")
        a(f"s_cmp_eq_u32 s{s_wave}, {d}")
        a(f"s_cbranch_scc1 {skip}")
        acc = acc_reg(d & 1, d >> 1)
        for c in range(4):
            a(f"ds_write_b128 v{F_T}, {vr(acc + 4 * c, 4)} offset:{d * 4096 + c * 1024}")
        a.label(skip)
    a("s_waitcnt lgkmcnt(0)")
    a("s_barrier")
    R = 128
    a(f"s_lshl_b32 s{s0}, s{s_wave}, 12")
    a(f"v_add_u32 v{F_T}, s{s0}, v{F_L16}")
    for k in range(1, 4):
        a(f"s_add_u32 s{s0}, s{s_wave}, {k}")
        a(f"s_and_b32 s{s0}, s{s0}, 3")
        a(f"s_mul_i32 s{s0}, s{s0}, {F_WREG}")
        a(f"v_add_u32 v{F_T + 1}, s{s0}, v{F_T}")
        for c in range(4):
            a(f"ds_read_b128 {vr(R + 16 * (k - 1) + 4 * c, 4)}, v{F_T + 1} offset:{c * 1024}")
    a.c("own block into v176..v191")
    OWN = 176
    for d in range(4):
        skip = a.uid("L_cp")
        a(f"s_cmp_lg_u32 s{s_wave}, {d}")
        a(f"s_cbranch_scc1 {skip}")
        acc = acc_reg(d & 1, d >> 1)
        for r in range(16):
            a(f"v_mov_b32 v{OWN + r}, v{acc + r}")
        a.label(skip)
    a("s_waitcnt lgkmcnt(0)")
    for k in range(3):
        for r in range(0, 16, 2):
            a(f"v_pk_add_f32 {vr(OWN + r, 2)}, {vr(OWN + r, 2)}, {vr(R + 16 * k + r, 2)}")
    for j in range(8):
        a(f"v_cvt_pk_bf16_f32 v{OWN + j}, v{OWN + 2 * j}, v{OWN + 2 * j + 1}")
    a("s_nop 1")
    for x, y in ((0, 2), (1, 3), (4, 6), (5, 7)):
        a(f"v_permlane32_swap_b32 v{OWN + x}, v{OWN + y}")
    a.c("byte offset = token * 896 + (64 nt + 32 nb + 8 half) * 2")
    a(f"s_lshl_b32 s{s0}, s{s_m}, 1")
    a(f"s_lshr_b32 s{s1}, s{s_wave}, 1")
    a(f"s_add_u32 s{s0}, s{s0}, s{s1}")
    a(f"s_mul_i32 s{s0}, s{s0}, {32 * 896}")
    a(f"s_lshl_b32 s{s1}, s{s_nt}, 7")
    a(f"s_add_u32 s{s0}, s{s0}, s{s1}")
    a(f"s_and_b32 s{s1}, s{s_wave}, 1")
    a(f"s_lshl_b32 s{s1}, s{s1}, 6")
    a(f"s_add_u32 s{s0}, s{s0}, s{s1}")
    a(f"v_and_b32 v{F_T}, 31, v{lane}")
    a(f"v_mul_u32_u24 v{F_T}, 896, v{F_T}")
    a(f"v_lshrrev_b32 v{F_T + 1}, 5, v{lane}")
    a(f"v_lshl_add_u32 v{F_T}, v{F_T + 1}, 4, v{F_T}")
    a(f"buffer_store_dwordx4 {vr(OWN, 4)}, v{F_T}, s[{srd_out}:{srd_out + 3}], s{s0} offen")
    a(f"buffer_store_dwordx4 {vr(OWN + 4, 4)}, v{F_T}, s[{srd_out}:{srd_out + 3}], s{s0} offen offset:32")
```

```python
from asmlib import *
from common import *

LX = 0
LW = 65536
LG = 151552
LJ = 152576
G_LDS_END = 153600

V_TID, V_LANE = 0, 1
ACC_Q = (16, 32)
ACC_K = (48, 64)
ACC_V = (80, 96)
ACC_G = 112
FR = (128, 160)
V_XA = 192
V_WA = 196
V_GA = 197
V_DX = 198
V_DW = 200
V_L16 = 206

S_SRD_X, S_SRD_W, S_SRD_WS, S_SRD_G = 4, 8, 12, 16
S_WAVE, S_B, S_I, S_P = 20, 21, 22, 23
S_KCD, S_CNT, S_XOFF, S_WOFF, S_MX, S_MW, S_M5, S_SLOTD, S_XBASE = 24, 25, 26, 27, 28, 29, 30, 31, 32
S_DX, S_DW, S_KCG, S_T0, S_T1, S_T2, S_T3 = 33, 34, 35, 46, 47, 48, 49
S_PTR = 36
S_RSLOT = 50


def decode_wg(a):
    a(f"s_and_b32 s{S_T0}, s2, 7")
    a(f"s_lshr_b32 s{S_T1}, s2, 3")
    a(f"s_and_b32 s{S_B}, s{S_T0}, 1")
    a(f"s_lshr_b32 s{S_I}, s{S_T0}, 1")
    a(f"s_lshl_b32 s{S_I}, s{S_I}, 2")
    a(f"s_lshr_b32 s{S_T2}, s{S_T1}, 3")
    a(f"s_add_u32 s{S_I}, s{S_I}, s{S_T2}")
    a(f"s_and_b32 s{S_P}, s{S_T1}, 7")
    a(f"v_lshrrev_b32 v2, 6, v{V_TID}")
    a(f"v_and_b32 v{V_LANE}, 63, v{V_TID}")
    a(f"v_readfirstlane_b32 s{S_WAVE}, v2")
    a(f"v_lshlrev_b32 v{V_L16}, 4, v{V_LANE}")


def dma_state(a):
    a(f"s_lshl_b32 s{S_XOFF}, s{S_KCD}, 7")
    a(f"s_add_u32 s{S_XOFF}, s{S_XOFF}, s{S_XBASE}")
    a(f"s_mul_i32 s{S_WOFF}, s{S_KCD}, 172032")
    a(f"s_mul_i32 s{S_T0}, s{S_P}, 112")
    a(f"s_add_u32 s{S_WOFF}, s{S_WOFF}, s{S_T0}")
    a(f"s_lshl_b32 s{S_MX}, s{S_SLOTD}, 14")
    a(f"s_lshl_b32 s{S_T0}, s{S_WAVE}, 12")
    a(f"s_add_u32 s{S_MX}, s{S_MX}, s{S_T0}")
    a(f"s_mul_i32 s{S_MW}, s{S_SLOTD}, 21504")
    a(f"s_lshl_b32 s{S_T0}, s{S_WAVE}, 10")
    a(f"s_add_u32 s{S_MW}, s{S_MW}, s{S_T0}")
    a(f"s_add_u32 s{S_MW}, s{S_MW}, {LW}")
    a(f"s_add_u32 s{S_M5}, s{S_MW}, 20480")
    a(f"s_cmp_eq_u32 s{S_WAVE}, 0")
    a(f"s_cselect_b32 s{S_M5}, s{S_M5}, {LJ}")


def dma_next(a):
    a(f"s_add_u32 s{S_KCD}, s{S_KCD}, 1")
    a(f"s_cmp_eq_u32 s{S_KCD}, 7")
    a(f"s_cselect_b32 s{S_KCD}, 0, s{S_KCD}")
    a(f"s_add_u32 s{S_SLOTD}, s{S_SLOTD}, 1")
    a(f"s_and_b32 s{S_SLOTD}, s{S_SLOTD}, 3")


def dma_one(a, n):
    if n < 4:
        a(f"s_add_u32 m0, s{S_MX}, {n * 1024}")
        a(f"s_add_u32 s{S_T3}, s{S_XOFF}, {n * 7168}")
        a(f"buffer_load_dwordx4 v{V_DX + (n & 1)}, s[{S_SRD_X}:{S_SRD_X + 3}], s{S_T3} offen lds")
    else:
        j = n - 4
        if j < 5:
            a(f"s_add_u32 m0, s{S_MW}, {j * 4096}")
        else:
            a(f"s_mov_b32 m0, s{S_M5}")
        a("s_nop 0")
        a(f"buffer_load_dwordx4 v{V_DW + j}, s[{S_SRD_W}:{S_SRD_W + 3}], s{S_WOFF} offen lds")


def frag_reads(s, fs):
    f = FR[fs]
    g = [[f"ds_read_b128 {vr(f, 4)}, v{V_XA + s}", f"ds_read_b128 {vr(f + 4, 4)}, v{V_GA} offset:{32 * s}"]]
    for blk in range(6):
        seg, hd = blk // 2, blk % 2
        off = seg * 7168 + s * 1792 + hd * 56
        g.append([f"ds_read_b64_tr_b16 {vr(f + 8 + 4 * blk, 2)}, v{V_WA} offset:{off}",
                  f"ds_read_b64_tr_b16 {vr(f + 10 + 4 * blk, 2)}, v{V_WA} offset:{off + 112}"])
    return g


def step(a, s, fs, k_transposed, dmas):
    f = FR[fs]
    nxt = frag_reads((s + 1) % 4, fs ^ 1)
    x, gt = vr(f, 4), vr(f + 4, 4)
    accs = [ACC_Q[0], ACC_Q[1], ACC_K[0], ACC_K[1], ACC_V[0], ACC_V[1]]
    dm = list(dmas)
    a("s_waitcnt lgkmcnt(12)")
    a(f"v_mfma_f32_32x32x16_bf16 {vr(ACC_G, 16)}, {gt}, {x}, {vr(ACC_G, 16)}")
    for r in nxt[0]:
        a(r)
    for blk in range(6):
        w = vr(f + 8 + 4 * blk, 4)
        acc = vr(accs[blk], 16)
        feature_rows = blk < 2 or (blk < 4 and k_transposed)
        a("s_waitcnt lgkmcnt(12)")
        if feature_rows:
            a(f"v_mfma_f32_32x32x16_bf16 {acc}, {w}, {x}, {acc}")
        else:
            a(f"v_mfma_f32_32x32x16_bf16 {acc}, {x}, {w}, {acc}")
        for r in nxt[blk + 1]:
            a(r)
        if blk % 2 == 0 and dm:
            dma_one(a, dm.pop(0))
    assert not dm


def prologue(a):
    a(f"s_load_dwordx4 s[{S_PTR}:{S_PTR + 3}], s[0:1], {KA_AX}")
    a(f"s_load_dwordx2 s[{S_PTR + 4}:{S_PTR + 5}], s[0:1], {KA_BWQKV}")
    a(f"s_load_dwordx2 s[{S_PTR + 6}:{S_PTR + 7}], s[0:1], {KA_GATE}")
    a(f"s_load_dwordx2 s[{S_PTR + 8}:{S_PTR + 9}], s[0:1], {KA_WS}")
    decode_wg(a)
    L = V_LANE
    a.c("x DMA lane offsets: 8 rows x 128 B, 16-B chunks xor-swizzled by (row >> 1) & 7")
    a(f"v_lshrrev_b32 v2, 3, v{L}")
    a("v_mul_u32_u24 v2, 896, v2")
    a(f"v_and_b32 v3, 7, v{L}")
    a(f"v_lshrrev_b32 v4, 4, v{L}")
    a("v_xor_b32 v5, v3, v4")
    a(f"v_lshl_add_u32 v{V_DX}, v5, 4, v2")
    a("v_xor_b32 v5, 4, v5")
    a(f"v_lshl_add_u32 v{V_DX + 1}, v5, 4, v2")
    a.c("W DMA lane offsets: piece q = wave + 4j covers 64 of the 448 16-B chunks of one 64-row segment")
    for j in range(6):
        a(f"s_add_u32 s{S_T0}, s{S_WAVE}, {4 * j}")
        a(f"s_mul_i32 s{S_T1}, s{S_T0}, 37")
        a(f"s_lshr_b32 s{S_T1}, s{S_T1}, 8")
        a(f"s_mul_i32 s{S_T2}, s{S_T1}, 7")
        a(f"s_sub_u32 s{S_T2}, s{S_T0}, s{S_T2}")
        a(f"s_lshl_b32 s{S_T2}, s{S_T2}, 6")
        a(f"s_mul_i32 s{S_T1}, s{S_T1}, 896")
        a(f"v_add_u32 v2, s{S_T2}, v{L}")
        a("v_mul_u32_u24 v3, 9363, v2")
        a("v_lshrrev_b32 v3, 16, v3")
        a("v_mul_u32_u24 v4, 7, v3")
        a("v_sub_u32 v4, v2, v4")
        a("v_and_b32 v5, 3, v3")
        a("v_lshlrev_b32 v5, 2, v5")
        a("v_bfe_u32 v6, v3, 2, 2")
        a("v_and_b32 v7, 0x30, v3")
        a("v_or3_b32 v5, v5, v6, v7")
        a("v_mul_u32_u24 v5, 2688, v5")
        a("v_lshl_add_u32 v5, v4, 4, v5")
        a(f"v_add_u32 v{V_DW + j}, s{S_T1}, v5")
        if j == 5:
            a(f"s_cmp_eq_u32 s{S_WAVE}, 0")
            a(f"s_cselect_b32 s{S_T0}, 0, 0x80000000")
            a(f"v_or_b32 v{V_DW + 5}, s{S_T0}, v{V_DW + 5}")
    a.c("fragment read addresses")
    a(f"v_and_b32 v2, 31, v{L}")
    a(f"v_lshrrev_b32 v3, 5, v{L}")
    a(f"s_lshl_b32 s{S_T0}, s{S_WAVE}, 12")
    a("v_lshlrev_b32 v4, 7, v2")
    a(f"v_add_u32 v4, s{S_T0}, v4")
    a("v_bfe_u32 v5, v2, 1, 3")
    for s in range(4):
        a(f"v_add_u32 v6, {2 * s}, v3")
        a("v_xor_b32 v6, v6, v5")
        a(f"v_lshl_add_u32 v{V_XA + s}, v6, 4, v4")
    a(f"v_bfe_u32 v4, v{L}, 2, 2")
    a("v_lshlrev_b32 v4, 1, v4")
    a("v_add_u32 v4, v4, v3")
    a("v_lshlrev_b32 v4, 1, v4")
    a("v_mul_u32_u24 v4, 112, v4")
    a(f"v_bfe_u32 v5, v{L}, 4, 1")
    a("v_lshl_add_u32 v4, v5, 5, v4")
    a(f"v_and_b32 v5, 3, v{L}")
    a("v_lshl_add_u32 v4, v5, 3, v4")
    a(f"v_add_u32 v{V_WA}, {LW}, v4")
    a(f"v_lshlrev_b32 v{V_GA}, 4, v3")
    a(f"v_add_u32 v{V_GA}, {LG}, v{V_GA}")
    for r in range(ACC_Q[0], ACC_G + 16):
        a(f"v_mov_b32 v{r}, 0")
    a.c("rotated chunk order so that workgroups sharing operands start on different chunks")
    a(f"s_lshr_b32 s{S_T0}, s2, 6")
    a(f"s_and_b32 s{S_T0}, s{S_T0}, 3")
    a(f"s_lshl_b32 s{S_T0}, s{S_T0}, 1")
    a(f"s_add_u32 s{S_KCD}, s{S_T0}, s{S_P}")
    a(f"s_sub_u32 s{S_T0}, s{S_KCD}, 7")
    a(f"s_cmp_ge_u32 s{S_KCD}, 7")
    a(f"s_cselect_b32 s{S_KCD}, s{S_T0}, s{S_KCD}")
    a(f"s_mov_b32 s{S_KCG}, s{S_KCD}")
    a(f"s_mov_b32 s{S_SLOTD}, 0")
    a(f"s_mov_b32 s{S_RSLOT}, 0")
    a(f"s_lshl_b32 s{S_T0}, s{S_I}, 2")
    a(f"s_add_u32 s{S_T0}, s{S_T0}, s{S_WAVE}")
    a(f"s_mul_i32 s{S_XBASE}, s{S_T0}, 28672")
    a("s_waitcnt lgkmcnt(0)")
    srd(a, S_SRD_X, S_PTR, S_PTR + 1, X_BYTES)
    a(f"s_cmp_eq_u32 s{S_B}, 0")
    a(f"s_cselect_b32 s{S_T0}, s{S_PTR + 2}, s{S_PTR + 4}")
    a(f"s_cselect_b32 s{S_T1}, s{S_PTR + 3}, s{S_PTR + 5}")
    srd(a, S_SRD_W, S_T0, S_T1, WQKV_BYTES)
    srd(a, S_SRD_G, S_PTR + 6, S_PTR + 7, GATE_BYTES)
    srd(a, S_SRD_WS, S_PTR + 8, S_PTR + 9, WS_USED)
    a(f"s_mov_b32 m0, {LG}")
    a("s_nop 0")
    a(f"buffer_load_dwordx4 v{V_L16}, s[{S_SRD_G}:{S_SRD_G + 3}], 0 offen lds")
    for c in range(2):
        dma_state(a)
        for n in range(10):
            dma_one(a, n)
        dma_next(a)
    dma_state(a)
    for n in range(3):
        dma_one(a, n)
    a(f"s_lshl_b32 s{S_T0}, s{S_KCG}, 7")
    a(f"v_add_u32 v{V_GA}, s{S_T0}, v{V_GA}")
    a("s_waitcnt vmcnt(13)")
    a("s_barrier")
    for grp in frag_reads(0, 0):
        for r in grp:
            a(r)
    a(f"s_mov_b32 s{S_CNT}, 0")


def kloop(a, k_transposed):
    top = a.uid("L_gloop")
    a.label(top)
    step(a, 0, 0, k_transposed, [3, 4])
    step(a, 1, 1, k_transposed, [5, 6, 7])
    step(a, 2, 0, k_transposed, [8, 9])
    a.c("next chunk landed and visible; slot of the previous chunk is free")
    a("s_waitcnt vmcnt(10)")
    a("s_barrier")
    a(f"s_cmp_eq_u32 s{S_RSLOT}, 3")
    a(f"s_mov_b32 s{S_DX}, 16384")
    a(f"s_mov_b32 s{S_DW}, 21504")
    a(f"s_cselect_b32 s{S_DX}, {-49152 & 0xffffffff}, s{S_DX}")
    a(f"s_cselect_b32 s{S_DW}, {-64512 & 0xffffffff}, s{S_DW}")
    a(f"s_add_u32 s{S_RSLOT}, s{S_RSLOT}, 1")
    a(f"s_and_b32 s{S_RSLOT}, s{S_RSLOT}, 3")
    for s in range(4):
        a(f"v_add_u32 v{V_XA + s}, s{S_DX}, v{V_XA + s}")
    a(f"v_add_u32 v{V_WA}, s{S_DW}, v{V_WA}")
    a(f"s_cmp_eq_u32 s{S_KCG}, 6")
    a(f"s_movk_i32 s{S_T0}, 128")
    a(f"s_cselect_b32 s{S_T0}, {-768 & 0xffffffff}, s{S_T0}")
    a(f"s_cselect_b32 s{S_KCG}, -1, s{S_KCG}")
    a(f"s_add_u32 s{S_KCG}, s{S_KCG}, 1")
    a(f"v_add_u32 v{V_GA}, s{S_T0}, v{V_GA}")
    dma_next(a)
    dma_state(a)
    a(f"s_cmp_ge_u32 s{S_CNT}, 4")
    a(f"s_cselect_b32 s{S_XOFF}, 0x40000000, s{S_XOFF}")
    a(f"s_cselect_b32 s{S_WOFF}, 0x40000000, s{S_WOFF}")
    step(a, 3, 1, k_transposed, [0, 1, 2])
    a(f"s_add_u32 s{S_CNT}, s{S_CNT}, 1")
    a(f"s_cmp_lt_u32 s{S_CNT}, 7")
    a(f"s_cbranch_scc1 {top}")
```

```python
from asmlib import *
from common import *
import phase_g as G
from phase_g import S_WAVE, S_B, S_I, S_P, S_T0, S_T1, S_T2, S_T3, S_SRD_WS, V_LANE, V_L16

SC = 16
V_Q = 160
V_KF = (168, 176)
V_VF = (184, 192)
V_O = 208
V_KA = 200
V_M = 201
V_M2 = 202
V_GATE = 204
V_U = 205
V_NEG = 240
V_PQ = 224
S_NINV = 58
S_MASK = 60
S_C = 92
S_HI = 94
LKV = 0


def causal_masks(a):
    a(f"v_and_b32 v2, 31, v{V_LANE}")
    a(f"v_lshrrev_b32 v3, 5, v{V_LANE}")
    a("v_lshlrev_b32 v3, 2, v3")
    a(f"v_sub_u32 v{V_U}, v2, v3")
    for r in range(16):
        key = (r & 3) + 8 * (r >> 2)
        a(f"v_cmp_le_i32_e64 s[{S_MASK + 2 * r}:{S_MASK + 2 * r + 1}], {key}, v{V_U}")
    a(f"s_mov_b32 s{S_C}, {f32bits(SCALE_C):#x}")
    a(f"s_mov_b32 s{S_C + 1}, {f32bits(SCALE_C):#x}")
    a(f"s_mov_b32 s{S_HI}, 0")
    a(f"s_mov_b32 s{S_HI + 1}, -1")


def k_reads(b, buf):
    return [f"ds_read_b128 {vr(V_KF[buf], 4)}, v{V_KA} offset:{LKV + b * 4096}",
            f"ds_read_b128 {vr(V_KF[buf] + 4, 4)}, v{V_KA} offset:{LKV + b * 4096 + 1024}"]


def v_reads(b, buf):
    return [f"ds_read_b128 {vr(V_VF[buf], 4)}, v{V_KA} offset:{LKV + b * 4096 + 2048}",
            f"ds_read_b128 {vr(V_VF[buf] + 4, 4)}, v{V_KA} offset:{LKV + b * 4096 + 3072}"]


def block_max(a, b, first):
    s = SC + 16 * b
    NEG = V_NEG
    if b in (0, 8):
        for r in range(16):
            m = f"s[{S_MASK + 2 * r}:{S_MASK + 2 * r + 1}]"
            if b == 8:
                a(f"v_cndmask_b32_e64 v{s + r}, v{NEG}, v{s + r}, {m}")
            else:
                a(f"v_cndmask_b32_e64 v{s + r}, v{s + r}, v{NEG}, {m}")
    if first:
        a(f"v_max3_f32 v{V_M}, v{s}, v{s + 1}, v{s + 2}")
        a(f"v_max_f32 v{V_M}, v{V_M}, v{s + 3}")
        start = 4
    else:
        start = 0
    for r in range(start, 16, 2):
        a(f"v_max3_f32 v{V_M}, v{V_M}, v{s + r}, v{s + r + 1}")


def attention(a):
    done_s = a.uid("L_sdone")
    a(f"v_mov_b32 v{V_NEG}, 0xf149f2ca")
    a.c("scores S^T = K Q^T, newest key block first; blocks before token 0 are skipped")
    for r in k_reads(8, 0):
        a(r)
    exits = {}
    for b in range(8, -1, -1):
        buf = (8 - b) & 1
        if b > 0:
            for r in k_reads(b - 1, buf ^ 1):
                a(r)
            a("s_waitcnt lgkmcnt(2)")
        else:
            a("s_waitcnt lgkmcnt(0)")
        s = vr(SC + 16 * b, 16)
        a(f"v_mfma_f32_32x32x16_bf16 {s}, {vr(V_KF[buf], 4)}, {vr(V_Q, 4)}, 0")
        a(f"v_mfma_f32_32x32x16_bf16 {s}, {vr(V_KF[buf] + 4, 4)}, {vr(V_Q + 4, 4)}, {s}")
        if b + 2 <= 8:
            block_max(a, b + 2, first=(b + 2 == 8))
        if b > 0:
            exits[b] = a.uid("L_sx")
            a(f"s_cmp_eq_u32 s{S_NINV}, {b}")
            a(f"s_cbranch_scc1 {exits[b]}")
    a("s_nop 7")
    a("s_nop 3")
    block_max(a, 1, False)
    block_max(a, 0, False)
    a(f"s_branch {done_s}")
    for b in range(8, 0, -1):
        a.label(exits[b])
        a("s_waitcnt lgkmcnt(0)")
        a("s_nop 7")
        a("s_nop 3")
        if b + 1 <= 8:
            block_max(a, b + 1, first=(b + 1 == 8))
        block_max(a, b, first=(b == 8))
        if b > 1:
            a(f"s_branch {done_s}")
    a.label(done_s)
    a.c("row maximum across the two lane halves")
    a(f"v_mov_b32 v{V_M2}, v{V_M}")
    a(f"v_mov_b32 v{V_M2 + 1}, v{V_M}")
    a("s_nop 1")
    a(f"v_permlane32_swap_b32 v{V_M2}, v{V_M2 + 1}")
    a("s_nop 1")
    a(f"v_max_f32 v{V_M}, v{V_M2}, v{V_M2 + 1}")
    a(f"v_mul_f32 v{V_M2}, {f32bits(-SCALE_C):#x}, v{V_M}")
    for r in range(16):
        a(f"v_mov_b32 v{V_O + r}, 0")
    a.c("P = exp2(c S - c max), O^T += V^T P^T")
    done_p = a.uid("L_pdone")
    for r in v_reads(8, 0):
        a(r)
    for b in range(8, -1, -1):
        buf = (8 - b) & 1
        s = SC + 16 * b
        if b > 0:
            for r in v_reads(b - 1, buf ^ 1):
                a(r)
        for r in range(0, 16, 2):
            a(f"v_pk_fma_f32 {vr(s + r, 2)}, {vr(s + r, 2)}, s[{S_C}:{S_C + 1}], {vr(V_M2, 2)} op_sel_hi:[1,1,0]")
        for r in range(16):
            a(f"v_exp_f32 v{s + r}, v{s + r}")
        for j in range(8):
            a(f"v_cvt_pk_bf16_f32 v{s + j}, v{s + 2 * j}, v{s + 2 * j + 1}")
        a("s_waitcnt lgkmcnt(2)" if b > 0 else "s_waitcnt lgkmcnt(0)")
        a("s_nop 0")
        a(f"v_mfma_f32_32x32x16_bf16 {vr(V_O, 16)}, {vr(V_VF[buf], 4)}, {vr(s, 4)}, {vr(V_O, 16)}")
        a(f"v_mfma_f32_32x32x16_bf16 {vr(V_O, 16)}, {vr(V_VF[buf] + 4, 4)}, {vr(s + 4, 4)}, {vr(V_O, 16)}")
        if b > 0:
            a(f"s_cmp_eq_u32 s{S_NINV}, {b}")
            a(f"s_cbranch_scc1 {done_p}")
    a.label(done_p)
    a("s_waitcnt lgkmcnt(0)")
    a("s_nop 7")
    a("s_nop 3")


def finish_o(a, acc, weight, eps):
    T = V_M2
    a(f"v_mov_b32 v{T}, v{acc + 12}")
    a(f"v_mov_b32 v{T + 1}, v{acc + 12}")
    a("s_nop 1")
    a(f"v_permlane32_swap_b32 v{T}, v{T + 1}")
    a("s_nop 1")
    if eps:
        a(f"v_add_f32 v{T + 1}, {f32bits(1e-6):#x}, v{T + 1}")
    a(f"v_rcp_f32 v{T + 1}, v{T + 1}")
    a("s_nop 0")
    a(f"v_mul_f32 v{T}, v{weight}, v{T + 1}")
    a("s_nop 0")
    for r in range(0, 16, 2):
        a(f"v_pk_mul_f32 {vr(acc + r, 2)}, {vr(acc + r, 2)}, {vr(T, 2)} op_sel_hi:[1,0]")
    for j in range(8):
        a(f"v_cvt_pk_bf16_f32 v{acc + j}, v{acc + 2 * j}, v{acc + 2 * j + 1}")
    for j in (6, 7):
        a(f"v_cndmask_b32_e64 v{acc + j}, v{acc + j}, 0, s[{S_HI}:{S_HI + 1}]")


def o_store(a, acc, slot_sgpr, flags=""):
    a(f"s_lshl_b32 s{S_T0}, s{S_I}, 2")
    a(f"s_add_u32 s{S_T0}, s{S_T0}, s{S_WAVE}")
    a(f"s_lshl_b32 s{S_T0}, s{S_T0}, 5")
    a(f"s_add_u32 s{S_T0}, s{S_T0}, s{slot_sgpr}")
    a(f"s_lshl_b32 s{S_T0}, s{S_T0}, 11")
    a(f"s_add_u32 s{S_T0}, s{S_T0}, {WS_O}")
    a(f"buffer_store_dwordx4 {vr(acc, 4)}, v{V_L16}, s[{S_SRD_WS}:{S_SRD_WS + 3}], s{S_T0} offen {flags}")
    a(f"buffer_store_dwordx4 {vr(acc + 4, 4)}, v{V_L16}, s[{S_SRD_WS}:{S_SRD_WS + 3}], s{S_T0} offen offset:1024 {flags}")


def linear_out(a, flags_ld="", flags_st=""):
    KV = SC
    a(f"s_lshl_b32 s{S_T0}, s{S_P}, 13")
    a(f"s_add_u32 s{S_T0}, s{S_T0}, {WS_KVF}")
    a(f"v_lshlrev_b32 v2, 2, v{V_LANE}")
    for hd in range(2):
        for r in range(16):
            a(f"buffer_load_dword v{KV + 16 * hd + r}, v2, s[{S_SRD_WS}:{S_SRD_WS + 3}], s{S_T0} offen offset:{256 * r} {flags_ld}")
        if hd == 0:
            a(f"s_add_u32 s{S_T0}, s{S_T0}, 4096")
    for hd in range(2):
        kv = KV + 16 * hd
        acc = KV + 32 + 16 * hd
        a("s_waitcnt vmcnt(16)" if hd == 0 else "s_waitcnt vmcnt(0)")
        for j in range(8):
            a(f"v_cvt_pk_bf16_f32 v{kv + j}, v{kv + 2 * j}, v{kv + 2 * j + 1}")
        a("s_nop 1")
        a(f"v_mfma_f32_32x32x16_bf16 {vr(acc, 16)}, {vr(kv, 4)}, {vr(V_PQ + 8 * hd, 4)}, 0")
        a(f"v_mfma_f32_32x32x16_bf16 {vr(acc, 16)}, {vr(kv + 4, 4)}, {vr(V_PQ + 8 * hd + 4, 4)}, {vr(acc, 16)}")
    a("s_nop 7")
    a("s_nop 7")
    for hd in range(2):
        acc = KV + 32 + 16 * hd
        finish_o(a, acc, V_GATE, eps=True)
        a(f"s_lshl_b32 s{S_T2}, s{S_P}, 1")
        a(f"s_add_u32 s{S_T2}, s{S_T2}, {hd}")
        o_store(a, acc, S_T2, flags_st)
```

```python
import sys
from asmlib import *
from common import *
import phase_g as G
import phase_e as E
import phase_t as T
import phase_f as F
from phase_g import S_WAVE, S_B, S_I, S_P, S_T0, S_T1, S_T2, S_T3, S_SRD_WS, V_LANE, V_L16, S_PTR


def head(a, name):
    a.lines.append(f".globl {name}")
    a.lines.append(".p2align 8")
    a.lines.append(f".type {name},@function")
    a.label(name)


def k_zero(a, name):
    head(a, name)
    a(f"s_load_dwordx2 s[4:5], s[0:1], {KA_WS}")
    a("s_cmp_ge_u32 s2, 16")
    a(f"s_cbranch_scc1 {name}_end")
    a("v_lshlrev_b32 v1, 4, v0")
    for r in range(4, 8):
        a(f"v_mov_b32 v{r}, 0")
    a("s_lshl_b32 s3, s2, 12")
    a(f"s_add_u32 s3, s3, {WS_KVF}")
    a("s_waitcnt lgkmcnt(0)")
    srd(a, 8, 4, 5, WS_USED)
    a("buffer_store_dwordx4 v[4:7], v1, s[8:11], s3 offen")
    a.label(f"{name}_end")
    a("s_endpgm")


def k_qkv(a, name):
    head(a, name)
    a("s_cmp_ge_u32 s2, 256")
    a(f"s_cbranch_scc1 {name}_end")
    G.prologue(a)
    a(f"s_cmp_eq_u32 s{S_B}, 0")
    a(f"s_cbranch_scc1 {name}_lin")
    G.kloop(a, True)
    a("s_waitcnt lgkmcnt(0)")
    E.epilogue_window(a)
    a("s_endpgm")
    a.label(f"{name}_lin")
    G.kloop(a, False)
    a("s_waitcnt lgkmcnt(0)")
    E.epilogue_linear(a)
    a.label(f"{name}_end")
    a("s_endpgm")


def k_attn(a, name):
    head(a, name)
    a("s_cmp_ge_u32 s2, 256")
    a(f"s_cbranch_scc1 {name}_end")
    a(f"s_load_dwordx2 s[{S_PTR}:{S_PTR + 1}], s[0:1], {KA_WS}")
    G.decode_wg(a)
    T.causal_masks(a)
    S_H = 59
    a.c("head of the attention task: 2p for window workgroups, 2p+1 for linear ones")
    a(f"s_lshl_b32 s{S_H}, s{S_P}, 1")
    a(f"s_xor_b32 s{S_T0}, s{S_B}, 1")
    a(f"s_add_u32 s{S_H}, s{S_H}, s{S_T0}")
    a(f"s_lshl_b32 s{S_T0}, s{S_I}, 2")
    a(f"s_add_u32 s{S_T0}, s{S_T0}, s{S_WAVE}")
    a(f"s_sub_u32 s{T.S_NINV}, 8, s{S_T0}")
    a(f"s_cselect_b32 s{T.S_NINV}, 0, s{T.S_NINV}")
    a(f"s_lshl_b32 s{S_T1}, s{S_WAVE}, 12")
    a(f"v_add_u32 v{T.V_KA}, s{S_T1}, v{V_L16}")
    a("s_waitcnt lgkmcnt(0)")
    srd(a, S_SRD_WS, S_PTR, S_PTR + 1, WS_USED)
    ws = f"s[{S_SRD_WS}:{S_SRD_WS + 3}]"
    a.c("key/value blobs of blocks 4i-8 .. 4i+3 into LDS; wave w fetches blocks 3w .. 3w+2")
    for jj in range(3):
        a(f"s_mul_i32 s{S_T0}, s{S_WAVE}, 3")
        a(f"s_add_u32 s{S_T0}, s{S_T0}, {jj}")
        a(f"s_lshl_b32 s{S_T3}, s{S_T0}, 12")
        a(f"s_lshl_b32 s{S_T1}, s{S_I}, 2")
        a(f"s_add_u32 s{S_T0}, s{S_T0}, s{S_T1}")
        a(f"s_sub_u32 s{S_T0}, s{S_T0}, 8")
        a(f"s_cselect_b32 s{S_T2}, 0x40000000, 0")
        a(f"s_cselect_b32 s{S_T0}, 0, s{S_T0}")
        a(f"s_lshl_b32 s{S_T1}, s{S_H}, 6")
        a(f"s_add_u32 s{S_T0}, s{S_T0}, s{S_T1}")
        a(f"s_lshl_b32 s{S_T0}, s{S_T0}, 11")
        a(f"s_add_u32 s{S_T0}, s{S_T0}, s{S_T2}")
        for piece, (base, stp) in enumerate(((WS_KB, 0), (WS_KB, 1), (WS_VB, 0), (WS_VB, 1))):
            a(f"s_add_u32 m0, s{S_T3}, {T.LKV + piece * 1024}")
            a(f"s_add_u32 s{S_T1}, s{S_T0}, {base + stp * 1024}")
            a(f"buffer_load_dwordx4 v{V_L16}, {ws}, s{S_T1} offen lds")
    a.c("query fragment and gate")
    a(f"s_lshl_b32 s{S_T0}, s{S_H}, 6")
    a(f"s_lshl_b32 s{S_T1}, s{S_I}, 2")
    a(f"s_add_u32 s{S_T1}, s{S_T1}, s{S_WAVE}")
    a(f"s_add_u32 s{S_T0}, s{S_T0}, s{S_T1}")
    a(f"s_lshl_b32 s{S_T0}, s{S_T0}, 11")
    a(f"s_add_u32 s{S_T0}, s{S_T0}, {WS_QB}")
    a(f"buffer_load_dwordx4 {vr(T.V_Q, 4)}, v{V_L16}, {ws}, s{S_T0} offen")
    a(f"buffer_load_dwordx4 {vr(T.V_Q + 4, 4)}, v{V_L16}, {ws}, s{S_T0} offen offset:1024")
    a(f"s_lshl_b32 s{S_T1}, s{S_T1}, 7")
    a(f"s_add_u32 s{S_T1}, s{S_T1}, {WS_G}")
    a(f"v_and_b32 v2, 31, v{V_LANE}")
    a("v_lshlrev_b32 v2, 2, v2")
    a(f"buffer_load_dword v{T.V_GATE}, v2, {ws}, s{S_T1} offen")
    a.c("phi(q) fragments (used by linear workgroups only)")
    for hd in range(2):
        a(f"s_lshl_b32 s{S_T0}, s{S_P}, 1")
        a(f"s_add_u32 s{S_T0}, s{S_T0}, {hd}")
        a(f"s_lshl_b32 s{S_T0}, s{S_T0}, 6")
        a(f"s_lshl_b32 s{S_T1}, s{S_I}, 2")
        a(f"s_add_u32 s{S_T0}, s{S_T0}, s{S_T1}")
        a(f"s_add_u32 s{S_T0}, s{S_T0}, s{S_WAVE}")
        a(f"s_lshl_b32 s{S_T0}, s{S_T0}, 11")
        a(f"s_add_u32 s{S_T0}, s{S_T0}, {WS_PQ}")
        a(f"buffer_load_dwordx4 {vr(T.V_PQ + 8 * hd, 4)}, v{V_L16}, {ws}, s{S_T0} offen")
        a(f"buffer_load_dwordx4 {vr(T.V_PQ + 8 * hd + 4, 4)}, v{V_L16}, {ws}, s{S_T0} offen offset:1024")
    a("s_waitcnt vmcnt(0)")
    a("s_barrier")
    T.attention(a)
    a(f"v_sub_f32 v207, 1.0, v{T.V_GATE}")
    T.finish_o(a, T.V_O, 207, eps=False)
    a(f"s_add_u32 s{S_T2}, s{S_H}, 16")
    T.o_store(a, T.V_O, S_T2)
    a(f"s_cmp_lg_u32 s{S_B}, 0")
    a(f"s_cbranch_scc1 {name}_end")
    T.linear_out(a)
    a.label(f"{name}_end")
    a("s_endpgm")


def k_out(a, name):
    head(a, name)
    a("s_cmp_ge_u32 s2, 224")
    a(f"s_cbranch_scc1 {name}_end")
    a(f"s_load_dwordx2 s[36:37], s[0:1], {KA_AWO}")
    a(f"s_load_dwordx2 s[38:39], s[0:1], {KA_BWO}")
    a(f"s_load_dwordx2 s[40:41], s[0:1], {KA_OUT}")
    a(f"s_load_dwordx2 s[42:43], s[0:1], {KA_WS}")
    S_M, S_NT, S_WOFF, S_MB = 22, 23, 26, 28
    a("s_and_b32 s46, s2, 7")
    a("s_lshr_b32 s47, s2, 3")
    a("s_mul_i32 s48, s47, 37")
    a("s_lshr_b32 s48, s48, 8")
    a(f"s_lshl_b32 s{S_M}, s46, 2")
    a(f"s_add_u32 s{S_M}, s{S_M}, s48")
    a("s_mul_i32 s48, s48, 7")
    a(f"s_sub_u32 s{S_NT}, s47, s48")
    a("v_lshrrev_b32 v2, 6, v0")
    a("v_and_b32 v1, 63, v0")
    a(f"v_readfirstlane_b32 s{S_WAVE}, v2")
    a(f"v_lshlrev_b32 v{F.F_L16}, 4, v1")
    F.w_lane_setup(a, 1, S_WAVE, 46)
    for r in range(F.F_ACC, F.F_ACC + 64):
        a(f"v_mov_b32 v{r}, 0")
    a(f"s_and_b32 s46, s{S_WAVE}, 1")
    a(f"s_mul_i32 s{S_WOFF}, s46, {224 * 896}")
    a(f"s_lshl_b32 s46, s{S_NT}, 7")
    a(f"s_add_u32 s{S_WOFF}, s{S_WOFF}, s46")
    a(f"s_mul_i32 s{S_MB}, s{S_WAVE}, {F.F_WREG}")
    a("s_waitcnt lgkmcnt(0)")
    a(f"s_cmp_lt_u32 s{S_WAVE}, 2")
    a("s_cselect_b32 s46, s36, s38")
    a("s_cselect_b32 s47, s37, s39")
    srd(a, 4, 46, 47, WO_BYTES)
    srd(a, 8, 40, 41, OUT_BYTES)
    srd(a, 12, 42, 43, WS_USED)
    a.c("o blob base: token block 2m, slot 8w")
    a(f"s_lshl_b32 s30, s{S_M}, 6")
    a(f"s_lshl_b32 s46, s{S_WAVE}, 3")
    a("s_add_u32 s30, s30, s46")
    a("s_lshl_b32 s30, s30, 11")
    a(f"s_add_u32 s30, s30, {WS_O}")
    issued = []
    nw = 0
    for hh in range(8):
        need = min(29, (28 * hh + 32 + 7) // 8)
        while nw < need:
            F.w_dma(a, nw, 4, S_WOFF, S_MB, 46)
            issued.append(("w", nw))
            nw += 1
        for tbl in range(2):
            a(f"s_add_u32 s46, s30, {tbl * 32 * 2048 + hh * 2048}")
            for st in range(2):
                a(f"buffer_load_dwordx4 {ar(tbl * 64 + hh * 8 + st * 4, 4)}, v{F.F_L16}, s[12:15], s46 offen offset:{st * 1024}")
                issued.append(("o", hh))
    total = len(issued)
    last_needed = {hh: max(i for i, (k, x) in enumerate(issued) if k == "o" and x == hh) for hh in range(8)}
    seq = [(hh, st) for hh in range(8) for st in range(2)]
    a(f"s_waitcnt vmcnt({total - 1 - last_needed[0]})")
    for r in F.w_reads(0, 0, 0):
        a(r)
    for n, (hh, st) in enumerate(seq):
        buf = n & 1
        if n + 1 < len(seq):
            h2, s2 = seq[n + 1]
            if s2 == 0:
                a(f"s_waitcnt vmcnt({total - 1 - last_needed[h2]})")
            for r in F.w_reads(h2, s2, buf ^ 1):
                a(r)
            a("s_waitcnt lgkmcnt(4)")
        else:
            a("s_waitcnt lgkmcnt(0)")
        F.mfmas(a, hh, st, buf)
    F.reduce_store(a, 1, S_WAVE, S_M, S_NT, 8, 46, 47)
    a.label(f"{name}_end")
    a("s_endpgm")


def build(extra_empty=0):
    a = Asm()
    main = NAME + "_kernel"
    hdr = open("cdna_kernels/" + NAME + ".s.ref").read().split("\n")
    top = [l for l in hdr if l.startswith(";") and "@launch" not in l and "Override launch" not in l]
    out = list(top)
    out.append("; @launch kernel=zero_kernel grid=(16,1,1) block=(256,1,1) lds=0")
    out.append(f"; @launch kernel=qkv_kernel grid=(256,1,1) block=(256,1,1) lds={G.G_LDS_END}")
    out.append("; @launch kernel=attn_kernel grid=(256,1,1) block=(256,1,1) lds=49152")
    for _ in range(extra_empty):
        out.append("; @launch kernel=empty_kernel grid=(256,1,1) block=(256,1,1) lds=0")
    out.append(f"; @launch kernel={main} grid=(224,1,1) block=(256,1,1) lds={4 * F.F_WREG}")
    out.append('.amdgcn_target "amdgcn-amd-amdhsa--gfx950"')
    out.append(".text")
    k_zero(a, "zero_kernel")
    k_qkv(a, "qkv_kernel")
    k_attn(a, "attn_kernel")
    k_out(a, main)
    names = [("zero_kernel", 16, 16), ("qkv_kernel", 256, 256), ("attn_kernel", 256, 256), (main, 384, 256)]
    if extra_empty:
        head(a, "empty_kernel")
        a("s_endpgm")
        names.append(("empty_kernel", 8, 8))
    out.append(a.text())
    out.append('.section .rodata,"a"')
    for n, nv, acc in names:
        out.append(".p2align 6")
        out.append(kernel_descriptor(n, nv, acc))
    return "\n".join(out) + "\n"


if __name__ == "__main__":
    dst = sys.argv[1] if len(sys.argv) > 1 else "cdna_kernels/" + NAME + ".s"
    extra = int(sys.argv[2]) if len(sys.argv) > 2 else 0
    open(dst, "w").write(build(extra))
    print("wrote", dst)
```
